```python
import torch

def _softmax(x, axis=-1):
    return torch.softmax(x, dim=axis)
def _gelu(x):
    return torch.nn.functional.gelu(x, approximate="tanh")
def _silu(x):
    return torch.nn.functional.silu(x)
def _sigmoid(x):
    return torch.sigmoid(x)
def _layernorm(x, axis=-1, eps=1e-5):
    m = x.mean(dim=axis, keepdim=True)
    v = x.var(dim=axis, keepdim=True, unbiased=False)
    return (x - m) / torch.sqrt(v + eps)
def _scatter_add(tgt, idx, src, axis=0):
    return tgt.clone().index_add_(axis, idx, src)
def _segment_sum(src, seg, n):
    out = torch.zeros((n,) + src.shape[1:], dtype=src.dtype)
    return out.index_add_(0, seg, src)
def _pad(x, pw):
    flat = tuple(v for pair in reversed(pw) for v in pair)
    return torch.nn.functional.pad(x, flat)

kernel_name = 'recurrent_scan__softmax_full_mha__glu_gated_swiglu__prompt'

def setup_inputs():

    _w = (lambda a: (lambda t: t.to(torch.bfloat16) if t.is_floating_point() else t)(torch.as_tensor(a)))
    def _A_setup():
        B, S, D = 1, 2048, 448
        return {
            "x": _w((lambda *s: torch.randn(*s, dtype=torch.bfloat16) * 0.05)(B, S, D)),
            "wqkv": _w((lambda *s: torch.randn(*s, dtype=torch.bfloat16) * 0.2)(D, 3 * D)),
            "wo": _w((lambda *s: torch.randn(*s, dtype=torch.bfloat16) * 0.2)(D, D)),
        }
    _A_in = _A_setup()

    def _B_setup():
        B, S, D, F = 1, 2048, 448, 1792
        return {
            "x": _w((lambda *s: torch.randn(*s, dtype=torch.bfloat16) * 0.05)(B, S, D)),
            "w1": _w((lambda *s: torch.randn(*s, dtype=torch.bfloat16) * 0.1)(D, F) * (2.0 / D) ** 0.5),
            "w3": _w((lambda *s: torch.randn(*s, dtype=torch.bfloat16) * 0.1)(D, F) * (2.0 / D) ** 0.5),
            "w2": _w((lambda *s: torch.randn(*s, dtype=torch.bfloat16) * 0.1)(F, D) * (2.0 / F) ** 0.5),
        }
    _B_in = _B_setup()

    return {
        "A_x": _A_in["x"],
        "A_wqkv": _A_in["wqkv"],
        "A_wo": _A_in["wo"],
        "B_x": _B_in["x"],
        "B_w1": _B_in["w1"],
        "B_w3": _B_in["w3"],
        "B_w2": _B_in["w2"],
    }

def reference(A_x, A_wqkv, A_wo, B_x, B_w1, B_w3, B_w2):
    def _A_ref(x, wqkv, wo):
        B, S, D = x.shape
        H = 16; Dh = D // H
        qkv = (lambda x, *d: x.permute(*d))((x @ wqkv).reshape(B, S, 3, H, Dh), 2, 0, 3, 1, 4)
        q, k, v = qkv[0], qkv[1], qkv[2]
        scale = Dh ** -0.5
        scores = torch.einsum("bhqd,bhkd->bhqk", q, k) * scale
        p = _softmax(scores, axis=-1)
        o = torch.einsum("bhqk,bhkd->bhqd", p, v)
        return (lambda x, *d: x.permute(*d))(o, 0, 2, 1, 3).reshape(B, S, D) @ wo

    def _B_ref(x, w1, w3, w2):
        gate = torch.einsum("bsd,df->bsf", x, w1)
        up = torch.einsum("bsd,df->bsf", x, w3)
        h = _silu(gate) * up
        out = torch.einsum("bsf,fd->bsd", h, w2)
        return out

    x = A_x
    xn = _layernorm(x, axis=-1)
    s = _A_ref(xn, A_wqkv, A_wo)
    g = _silu(_B_ref(xn, B_w1, B_w3, B_w2))
    return x + s * g
```

```python
import re


class Asm:
    def __init__(self):
        self.lines = []
        self.vm = []
        self.nlab = 0

    def e(self, s):
        for ln in s.split('\n'):
            ln = ln.strip()
            if ln:
                self.lines.append('    ' + ln)

    def c(self, s):
        self.lines.append('    ; ' + s)

    def label(self, l):
        self.lines.append(l + ':')

    def newlabel(self, p='L'):
        self.nlab += 1
        return f'{p}_{self.nlab}'

    def raw(self, s):
        self.lines.append(s)

    def vm_reset(self):
        self.vm = []

    def vmop(self, s, tag):
        self.e(s)
        self.vm.append(tag)

    def vm_need(self, tags):
        if isinstance(tags, str):
            tags = [tags]
        last = -1
        for i, t in enumerate(self.vm):
            if t in tags:
                last = i
        return len(self.vm) - 1 - last if last >= 0 else None

    def vm_wait(self, tags, extra=''):
        n = self.vm_need(tags)
        if n is None:
            if extra:
                self.e(f's_waitcnt {extra}')
            return
        assert n <= 63, n
        self.e(f's_waitcnt vmcnt({n}) {extra}'.strip())
        self.vm = self.vm[len(self.vm) - n:] if n else []

    def vm_wait_all(self, extra=''):
        self.e(f's_waitcnt vmcnt(0) {extra}'.strip())
        self.vm = []

    def text(self):
        return '\n'.join(self.lines) + '\n'


def vr(base, n=1):
    return f'v{base}' if n == 1 else f'v[{base}:{base + n - 1}]'


def sr(base, n=1):
    return f's{base}' if n == 1 else f's[{base}:{base + n - 1}]'


_REG = re.compile(r'\b([vs])(\d+)\b|\b([vs])\[(\d+):(\d+)\]|\b(vcc|exec|m0)\b')
TRANS = ('v_exp_f32', 'v_log_f32', 'v_rcp_f32', 'v_rsq_f32', 'v_sqrt_f32', 'v_sin_f32', 'v_cos_f32')


def regs_of(op):
    out = set()
    for m in _REG.finditer(op):
        if m.group(1):
            out.add(m.group(1) + m.group(2))
        elif m.group(3):
            for i in range(int(m.group(4)), int(m.group(5)) + 1):
                out.add(m.group(3) + str(i))
        else:
            out.add(m.group(6))
    return out


def split_ops(s):
    ops, depth, cur = [], 0, ''
    for ch in s:
        if ch == '[':
            depth += 1
        if ch == ']':
            depth -= 1
        if ch == ',' and depth == 0:
            ops.append(cur.strip())
            cur = ''
        else:
            cur += ch
    if cur.strip():
        ops.append(cur.strip())
    return ops


def parse(line):
    line = line.split(';')[0].strip()
    if not line or line.endswith(':') or line.startswith('.'):
        return None
    parts = line.split(None, 1)
    mn = parts[0]
    ops = split_ops(parts[1]) if len(parts) > 1 else []
    base = mn.replace('_e32', '').replace('_e64', '')
    kind = 'other'
    w, r = set(), set()
    srcC = set()
    srcAB = set()
    if base.startswith('v_mfma'):
        kind = 'mfma'
        w = regs_of(ops[0])
        srcAB = regs_of(ops[1]) | regs_of(ops[2])
        srcC = regs_of(ops[3].split()[0])
        r = srcAB | srcC
    elif base.startswith('v_cmp'):
        kind = 'valu'
        w = regs_of(ops[0])
        for o in ops[1:]:
            r |= regs_of(o)
    elif base.startswith('v_permlane32_swap') or base.startswith('v_permlane16_swap'):
        kind = 'valu'
        w = regs_of(ops[0]) | regs_of(ops[1])
        r = set(w)
    elif base.startswith('v_'):
        kind = 'valu'
        w = regs_of(ops[0])
        rest = ops[1:]
        if base in ('v_add_co_u32', 'v_addc_co_u32', 'v_sub_co_u32'):
            w |= regs_of(ops[1])
            rest = ops[2:]
        for o in rest:
            r |= regs_of(o.split(' op_sel')[0])
        if base in ('v_fmac_f32', 'v_dot2c_f32_bf16'):
            r |= w
        if base == 'v_cndmask_b32' and len(ops) == 3:
            r.add('vcc')
    elif base.startswith('ds_'):
        kind = 'ds'
        if base.startswith('ds_read') or '_rtn' in base or base.startswith('ds_bpermute') or base.startswith('ds_swizzle'):
            w = regs_of(ops[0])
            for o in ops[1:]:
                r |= regs_of(o.split(' offset')[0])
        else:
            for o in ops:
                r |= regs_of(o.split(' offset')[0])
    elif base.startswith('buffer_') or base.startswith('global_'):
        kind = 'vmem'
        full = parts[1]
        is_lds = re.search(r'\blds\b', full) is not None
        if 'load' in base and not is_lds:
            w = regs_of(ops[0])
            for o in ops[1:]:
                r |= regs_of(o)
        elif 'atomic' in base and ' sc0' in full:
            w = regs_of(ops[0])
            for o in ops:
                r |= regs_of(o)
        else:
            for o in ops:
                r |= regs_of(o)
        if is_lds:
            r.add('m0')
    elif base.startswith('s_'):
        kind = 'salu'
        if base in ('s_waitcnt', 's_barrier', 's_nop', 's_sleep', 's_setprio', 's_endpgm', 's_branch') or base.startswith('s_cbranch'):
            pass
        elif base.startswith('s_cmp'):
            for o in ops:
                r |= regs_of(o)
        else:
            w = regs_of(ops[0])
            for o in ops[1:]:
                r |= regs_of(o)
            if 'saveexec' in base:
                w.add('exec')
    states = 1
    if base == 's_nop':
        states = int(ops[0], 0) + 1
    return dict(mn=base, kind=kind, w=w, r=r, srcC=srcC, srcAB=srcAB, states=states, text=line, ops=ops)


def check_hazards(lines):
    ins = []
    pos = 0
    for n, ln in enumerate(lines):
        p = parse(ln)
        if p is None:
            continue
        p['pos'] = pos
        p['line'] = n
        pos += p['states']
        ins.append(p)
    probs = []

    def dist(a, b):
        return b['pos'] - a['pos'] - a['states']

    W = 24
    for j, b in enumerate(ins):
        for i in range(j - 1, max(-1, j - W - 1), -1):
            a = ins[i]
            if a['mn'] in ('s_branch', 's_endpgm'):
                break
            d = dist(a, b)
            if d >= 20:
                break
            need = 0
            why = ''
            vw = {x for x in a['w'] if x[0] == 'v' and x != 'vcc'}
            sw = {x for x in a['w'] if x[0] == 's' or x == 'vcc'}
            if a['kind'] == 'valu':
                isdot = a['mn'].startswith('v_dot')
                if b['kind'] == 'mfma' and vw & b['r']:
                    need, why = (3 if isdot else 2), 'valu->mfma'
                if isdot and b['kind'] != 'salu' and vw & (b['r'] | b['w']):
                    if b['mn'] == a['mn']:
                        ab = set()
                        for o in b['ops'][1:3]:
                            ab |= regs_of(o)
                        if vw & ab:
                            need, why = max(need, 3), 'dot->dot AB'
                    else:
                        need, why = max(need, 3), 'dot->other'
                if a['mn'] in TRANS and b['kind'] in ('valu',) and b['mn'] not in TRANS and vw & b['r']:
                    need, why = max(need, 1), 'trans->valu'
                if b['mn'].startswith('v_permlane') and vw & b['r']:
                    need, why = max(need, 2), 'valu->permlane'
                if b['mn'] in ('v_readfirstlane_b32', 'v_readlane_b32') and vw & b['r']:
                    need, why = max(need, 1), 'valu->readlane'
                if sw and b['kind'] == 'valu' and sw & b['r']:
                    need, why = max(need, 2), 'valu sgpr->valu'
                if sw and b['kind'] == 'vmem' and sw & b['r']:
                    need, why = max(need, 5), 'valu sgpr->vmem'
                if 'exec' in a['w'] and b['kind'] in ('mfma',):
                    need, why = max(need, 4), 'valu exec->mfma'
            if a['kind'] == 'mfma':
                big = '32x32' in a['mn']
                n_rw = 12 if big else 8
                n_c = 10 if big else 6
                n_war = 7 if big else 3
                if b['kind'] == 'mfma':
                    if a['w'] & b['srcAB']:
                        need, why = n_rw, 'mfma D->mfma AB'
                    elif a['w'] & b['srcC'] and (a['w'] != b['srcC'] or a['mn'] != b['mn']):
                        need, why = n_c, 'mfma D->mfma C overlap'
                elif b['kind'] == 'valu':
                    if a['w'] & (b['r'] | b['w']):
                        need, why = n_rw, 'mfma D->valu'
                    elif a['srcC'] & b['w']:
                        need, why = n_war, 'mfma C war'
                elif b['kind'] in ('ds', 'vmem'):
                    if a['w'] & (b['r'] | b['w']):
                        need, why = n_rw, 'mfma D->mem'
            if a['kind'] == 'salu' and 'm0' in a['w'] and b['kind'] == 'vmem' and 'm0' in b['r']:
                need, why = max(need, 1), 'm0->lds dma'
            if a['kind'] == 'vmem' and ('store_dwordx4' in a['mn'] or 'store_dwordx3' in a['mn']):
                data = regs_of(a['ops'][0]) if a['mn'].startswith('buffer') else regs_of(a['ops'][1])
                if b['kind'] == 'valu' and data & b['w']:
                    need, why = max(need, 2), 'store data war'
                elif data & b['w']:
                    need, why = max(need, 1), 'store data war'
            if d < need:
                probs.append(f"line {b['line']}: {why}: need {need} have {d}\n   A: {a['text']}\n   B: {b['text']}")
    return probs
```

```python
import sys
import math
import struct
from asmlib import Asm, vr, sr, check_hazards

NAME = 'recurrent_scan__softmax_full_mha__glu_gated_swiglu__prompt'
INSTR = '--instr' in sys.argv
FORCE_REDO = '--force-redo' in sys.argv
OUT = [a for a in sys.argv[1:] if not a.startswith('--')]
OUT = OUT[0] if OUT else f'cdna_kernels/{NAME}.s'


def f32(x):
    return '0x%08x' % struct.unpack('<I', struct.pack('<f', x))[0]


WS_LU = 128
WS_LH = WS_LU + 48 * 128
WS_LO = WS_LH + 16 * 128
WS_STAMP = 0x10000
WS_Q = 0x100000
WS_KV = 0x400000
WS_H = 0x800000
WS_O = 0x1000000
WS_SIZE = 0x1200000

LDS_BYTES = 163840
WQA = 114688
SLOT = [49152, 78080, 0, 107008]
STAGE_SLOT = [0, 1, 2, 3, 0, 1, 2]
W3OFF = 14464
VSCR = 28928
RED = 0
W2R = 49152
WOI = 98304
CT = 161280
C_A1, C_RELA, C_A2, C_REDO, C_A3, C_M = 0, 4, 8, 12, 16, 20
C_F, C_H, C_RELH, C_RELO, C_GDONE = 32, 36, 40, 44, 48
C_STAT = 128
C_CSQ = 1152
C_CSF = 1536

SX, SWQ, SW1, SW3, SW2, SWO, SOUT, SWS = 24, 28, 32, 36, 40, 44, 48, 52
sWAVE, sG, sRB, sS, sSIG, sH, sRBA, sRB64, sCB, sTAG, sIDX = 60, 61, 62, 63, 64, 65, 66, 67, 68, 69, 70
sT = list(range(71, 84))
SSEL = 56
sONE = 20
sPASS = 21

LOG2E = 1.4426950408889634
QSCALE = 28 ** -0.5 * LOG2E
BIAS = 64.0
LIMIT = 2.0 ** 100
SPIN_MAX = 1 << 15

A = Asm()
e = A.e


def stamp(k):
    if INSTR:
        e(f's_memtime s[84:85]\ns_waitcnt lgkmcnt(0)\ns_mov_b32 s{86 + k}, s84')


def stamp_store():
    if not INSTR:
        return
    e(f's_lshl_b32 s71, s2, 3\ns_add_u32 s71, s71, s{sWAVE}\ns_lshl_b32 s71, s71, 6\ns_add_u32 s71, s71, {WS_STAMP}')
    e('s_mov_b64 exec, 1\nv_mov_b32 v1, 0')
    for q in range(4):
        for i in range(4):
            e(f'v_mov_b32 v{4 + i}, s{86 + 4 * q + i}')
        e(f'buffer_store_dwordx4 v[4:7], v1, s[{SWS}:{SWS + 3}], s71 offen offset:{16 * q}')
        e('s_nop 1')
    e('s_waitcnt vmcnt(0)')


def mfma(d, a, b, c):
    cs = '0' if c is None else vr(c, 16)
    e(f'v_mfma_f32_32x32x16_bf16 {vr(d, 16)}, {vr(a, 4)}, {vr(b, 4)}, {cs}')


def srd(base, ptr, size):
    e(f's_mov_b32 s{base}, s{ptr}\ns_mov_b32 s{base + 1}, s{ptr + 1}\ns_mov_b32 s{base + 2}, {size}\ns_mov_b32 s{base + 3}, 0x20000')


def lds_arrive(vct, vone, off):
    e(f's_mov_b64 exec, 1\nds_add_u32 v{vct}, v{vone} offset:{off}\ns_mov_b64 exec, -1')


def lds_wait_ge(vct, vt, off, target, sleep=1):
    L = A.newlabel('LW')
    D = A.newlabel('LD')
    e('s_mov_b32 s3, 0x40000')
    A.label(L)
    e(f'ds_read_b32 v{vt}, v{vct} offset:{off}\ns_waitcnt lgkmcnt(0)\nv_readfirstlane_b32 s71, v{vt}\ns_cmp_ge_u32 s71, {target}\ns_cbranch_scc1 {D}')
    e(f's_sleep {sleep}\ns_sub_u32 s3, s3, 1\ns_cmp_lg_u32 s3, 0\ns_cbranch_scc1 {L}')
    A.label(D)


def global_poll(vaddr, vt, nload=1):
    L = A.newlabel('GP')
    D = A.newlabel('GD')
    e(f's_mov_b32 s72, {SPIN_MAX}')
    A.label(L)
    for i in range(nload):
        e(f'buffer_load_dword v{vt + i}, v{vaddr + i}, s[{SWS}:{SWS + 3}], 0 offen sc1')
    e('s_waitcnt vmcnt(0)')
    e(f'v_cmp_ne_u32 vcc, s{sTAG}, v{vt}')
    for i in range(1, nload):
        e(f'v_cmp_ne_u32 s[74:75], s{sTAG}, v{vt + i}\ns_or_b64 vcc, vcc, s[74:75]')
    e(f's_cbranch_vccz {D}\ns_sub_u32 s72, s72, 1\ns_cmp_eq_u32 s72, 0\ns_cbranch_scc1 {D}\ns_sleep 1\ns_branch {L}')
    A.label(D)


def prologue():
    e('s_cmp_ge_u32 s2, 256\ns_cbranch_scc1 L_end')
    e('s_load_dwordx16 s[4:19], s[0:1], 0\ns_load_dwordx4 s[20:23], s[0:1], 64')
    if INSTR:
        e('s_memtime s[84:85]')
    e('v_lshrrev_b32 v1, 6, v0\nv_and_b32 v0, 63, v0')
    e(f'v_readfirstlane_b32 s{sWAVE}, v1')
    e(f's_and_b32 s71, s2, 7\ns_lshr_b32 s{sIDX}, s2, 3')
    e(f's_and_b32 s72, s71, 1\ns_lshl_b32 s72, s72, 3\ns_and_b32 s73, s{sIDX}, 7\ns_add_u32 s{sRB}, s72, s73')
    e(f's_lshr_b32 s72, s71, 1\ns_lshl_b32 s72, s72, 2\ns_lshr_b32 s73, s{sIDX}, 3\ns_add_u32 s{sS}, s72, s73')
    sig = [0, 1, 2, 3, 4, 5, 7, 6, 9, 8, 10, 11, 12, 13, 14, 15]
    lo = sum(sig[i] << (4 * i) for i in range(8))
    hi = sum(sig[8 + i] << (4 * i) for i in range(8))
    e(f's_mov_b32 s72, {lo:#x}\ns_mov_b32 s73, {hi:#x}\ns_lshl_b32 s74, s{sS}, 2\ns_lshr_b64 s[72:73], s[72:73], s74\ns_and_b32 s{sSIG}, s72, 15')
    e(f's_lshl_b32 s72, s71, 1\ns_and_b32 s73, s{sIDX}, 1\ns_or_b32 s{sH}, s72, s73\ns_lshr_b32 s{sRBA}, s{sIDX}, 1')
    e(f's_mul_i32 s72, s{sIDX}, 37\ns_lshr_b32 s72, s72, 8\ns_mul_i32 s73, s72, 7\ns_sub_u32 s{sCB}, s{sIDX}, s73\ns_lshl_b32 s73, s71, 2\ns_add_u32 s{sRB64}, s73, s72')
    e(f's_and_b32 s{sG}, s{sWAVE}, 3')
    e('v_and_b32 v10, 31, v0\nv_lshrrev_b32 v11, 5, v0')
    e(f'v_bfe_u32 v12, v0, 1, 3\nv_lshlrev_b32 v13, 2, v11\ns_lshl_b32 s72, s{sG}, 12\nv_lshl_add_u32 v14, v10, 7, s72')
    e(f's_cmp_ge_u32 s{sWAVE}, 4\ns_cselect_b32 s73, s{sG}, 0')
    for q in range(4):
        e(f's_add_u32 s74, s73, {q}\ns_and_b32 s74, s74, 3\nv_add_u32 v15, s74, v13\nv_xor_b32 v15, v15, v12\nv_lshl_add_u32 v{4 + q}, v15, 4, v14')
    e('v_bfe_u32 v12, v0, 2, 2\nv_lshl_add_u32 v12, v11, 5, v12\nv_mul_u32_u24 v12, 192, v12')
    e('v_bfe_u32 v13, v0, 4, 1\nv_lshl_add_u32 v12, v13, 5, v12\nv_and_b32 v13, 3, v0\nv_lshl_add_u32 v12, v13, 3, v12')
    e(f'v_add_u32 v8, {WQA}, v12')
    e('v_and_b32 v13, 0x13, v0\nv_cmp_eq_u32 vcc, 0x12, v13\nv_add_u32 v9, 112, v8\nv_add_u32 v13, 120, v8\nv_cndmask_b32 v9, v9, v13, vcc')
    e(f's_cmp_ge_u32 s{sWAVE}, 4\ns_cbranch_scc1 L_ffn')


def common_srds():
    srd(SWS, 22, WS_SIZE)
    e(f's_load_dword s{sTAG}, s[22:23], 0')
    srd(SX, 4, 2048 * 896)
    srd(SWQ, 6, 448 * 2688)


def finish_tag():
    e(f's_mul_i32 s{sTAG}, s{sTAG}, 0x9e3779b1\ns_add_u32 s{sTAG}, s{sTAG}, 0x7f4a7c15')


def attn_role():
    A.vm_reset()
    e('s_setprio 2')
    e('v_lshrrev_b32 v12, 3, v0\nv_mul_u32_u24 v12, 896, v12\nv_and_b32 v13, 7, v0\nv_lshrrev_b32 v14, 4, v0')
    e('v_xor_b32 v15, v13, v14\nv_lshl_add_u32 v1, v15, 4, v12\nv_xor_b32 v15, 4, v15\nv_lshl_add_u32 v2, v15, 4, v12')
    e(f's_lshl_b32 s73, s{sRB}, 2\ns_add_u32 s73, s73, s{sG}\ns_mul_i32 s73, s73, {32 * 896}')
    e(f's_lshl_b32 s74, s{sG}, 12')
    e('s_waitcnt lgkmcnt(0)')
    if INSTR:
        e('s_mov_b32 s86, s84')
    common_srds()
    for u in range(7):
        for i in range(4):
            e(f's_add_u32 m0, s74, {u * 16384 + i * 1024}\ns_add_u32 s75, s73, {i * 8 * 896 + u * 128}')
            A.vmop(f'buffer_load_dwordx4 v{1 + (i & 1)}, s[{SX}:{SX + 3}], s75 offen lds', f'x{u}')
    L = A.newlabel('LZ')
    e(f's_cmp_lg_u32 s{sWAVE}, 3\ns_cbranch_scc1 {L}')
    e(f'v_mov_b32 v16, 0\nv_mov_b32 v17, 0\nv_mov_b32 v18, 0\nv_mov_b32 v19, 0\nv_lshlrev_b32 v12, 4, v0\nv_add_u32 v12, {CT}, v12')
    e('ds_write_b128 v12, v[16:19]\nds_write_b128 v12, v[16:19] offset:1024')
    e('s_mov_b32 exec_hi, 0\nds_write_b128 v12, v[16:19] offset:2048\ns_mov_b32 exec_hi, -1')
    A.label(L)
    e('s_waitcnt lgkmcnt(0)')
    finish_tag()
    ACC = 48
    XF = [16, 32]
    WF = [20, 36]

    def reads(u, q):
        s = q & 1
        xo = u * 16384 if u < 4 else (u - 4) * 16384
        e(f'ds_read_b128 {vr(XF[s], 4)}, v{4 + q} offset:{xo}')
        cb = 12288 * (u if u < 3 else u - 3)
        for t in range(3):
            for h in range(2):
                off = cb + (8 * q + 4 * h) * 192 + (56 * t if t < 2 else 0)
                e(f'ds_read_b64_tr_b16 {vr(WF[s] + 4 * t + 2 * h, 2)}, v{8 if t < 2 else 9} offset:{off}')

    def mm(u, q):
        s = q & 1
        for t in range(3):
            mfma(ACC + 16 * t, WF[s] + 4 * t, XF[s], None if (u == 0 and q == 0) else ACC + 16 * t)

    for u in range(7):
        A.vm_wait(f'x{u}')
        e('s_barrier')
        if u == 0:
            stamp(1)
        if u == 3:
            e(f'v_subrev_u32 v8, {WQA}, v8\nv_subrev_u32 v9, {WQA}, v9')
        if u == 4:
            for q in range(4):
                e(f'v_add_u32 v{4 + q}, 0x10000, v{4 + q}')
        reads(u, 0)
        reads(u, 1)
        e('s_waitcnt lgkmcnt(7)')
        mm(u, 0)
        reads(u, 2)
        e('s_waitcnt lgkmcnt(7)')
        mm(u, 1)
        reads(u, 3)
        e('s_waitcnt lgkmcnt(7)')
        mm(u, 2)
        e('s_waitcnt lgkmcnt(0)')
        mm(u, 3)
    e('s_barrier')
    stamp(2)
    e(f'v_mov_b32 v1, {CT}\nv_mov_b32 v2, 1\nv_lshlrev_b32 v3, 4, v0')
    e(f's_lshl_b32 s72, s{sG}, 7\ns_add_u32 s72, s72, {CT + C_STAT}\nv_lshl_add_u32 v12, v10, 2, s72')
    e(f'v_lshlrev_b32 v13, 2, v10\nv_add_u32 v13, {CT + C_CSQ}, v13')
    e('ds_read_b32 v14, v12\nds_read_b32 v15, v12 offset:512')
    for t in range(3):
        e(f'ds_read_b32 v{96 + t}, v13 offset:{128 * t}')
    for r in (17, 18, 19, 21, 22, 23, 25, 26, 27, 29, 30, 31):
        e(f'v_mov_b32 v{r}, 0')
    e('v_cmp_ne_u32 vcc, 0, v11')
    e('s_waitcnt lgkmcnt(0)')
    e('v_cvt_pk_bf16_f32 v99, v14, v14\nv_lshlrev_b32 v99, 16, v99\nv_sub_f32 v100, v14, v99\nv_cndmask_b32 v99, v99, v100, vcc')
    e('v_cvt_pk_bf16_f32 v16, -v99, -v99')
    for t in range(3):
        e(f'v_cvt_pk_bf16_f32 v100, v{96 + t}, v{96 + t}\nv_lshlrev_b32 v100, 16, v100\nv_sub_f32 v100, v{96 + t}, v100\nv_cvt_pk_bf16_f32 v{20 + 4 * t}, v{96 + t}, v100')
    e('s_nop 1')
    for t in range(3):
        mfma(ACC + 16 * t, 20 + 4 * t, 16, ACC + 16 * t)
    e(f's_mul_i32 s72, s{sG}, 2304\ns_add_u32 s72, s72, {VSCR}')
    e('v_mul_u32_u24 v12, 72, v10\nv_lshl_add_u32 v12, v11, 3, v12\nv_add_u32 v12, s72, v12')
    e('v_bfe_u32 v13, v0, 2, 2\nv_lshl_add_u32 v13, v11, 2, v13\nv_mul_u32_u24 v13, 72, v13')
    e('v_bfe_u32 v14, v0, 4, 1\nv_lshl_add_u32 v13, v14, 5, v13\nv_and_b32 v14, 3, v0\nv_lshl_add_u32 v13, v14, 3, v13\nv_add_u32 v13, s72, v13')
    e(f's_lshl_b32 s76, s{sRB}, 2\ns_add_u32 s76, s76, s{sG}')
    e(f's_mul_i32 s77, s{sS}, 3')
    e(f'v_mul_f32 v14, {f32(QSCALE)}, v15')
    for t in range(3):
        P = 96 + 8 * t
        a = ACC + 16 * t
        LK, LV, LS, LE = (A.newlabel(x) for x in ('LK', 'LV', 'LS', 'LE'))
        e(f's_add_u32 s78, s77, {t}\ns_and_b32 s79, s78, 15\ns_lshl_b32 s79, s79, 6\ns_add_u32 s79, s79, s76')
        e(f's_cmp_lt_u32 s78, 16\ns_cselect_b64 vcc, -1, 0')
        e('v_cndmask_b32 v120, v15, v14, vcc')
        if t == 0:
            e('s_nop 4')
        for i in range(8):
            e(f'v_pk_mul_f32 {vr(a + 2 * i, 2)}, {vr(a + 2 * i, 2)}, v[120:121] op_sel_hi:[1,0]')
        for i in range(8):
            e(f'v_cvt_pk_bf16_f32 v{P + i}, v{a + 2 * i}, v{a + 2 * i + 1}')
        e(f's_cmp_ge_u32 s78, 32\ns_cbranch_scc1 {LV}')
        e(f's_cmp_ge_u32 s78, 16\ns_cbranch_scc1 {LK}')
        e(f's_lshl_b32 s79, s79, 11\ns_add_u32 s79, s79, {WS_Q}\ns_mov_b32 s80, 0\ns_mov_b32 s81, 0\ns_branch {LS}')
        A.label(LK)
        e(f's_lshl_b32 s79, s79, 12\ns_add_u32 s79, s79, {WS_KV}\ns_mov_b32 s80, 0x3f803f80\ns_mov_b32 s81, 0x3f80')
        A.label(LS)
        e(f's_mov_b32 exec_lo, 0\nv_mov_b32 v{P + 6}, s80\nv_mov_b32 v{P + 7}, s81\ns_mov_b32 exec_lo, -1\ns_branch {LE}')
        A.label(LV)
        e(f's_lshl_b32 s79, s79, 12\ns_add_u32 s79, s79, {WS_KV + 2048}')
        e(f's_mov_b32 exec_lo, 0\nv_mov_b32 v{P + 6}, 0x3f80\nv_mov_b32 v{P + 7}, 0\ns_mov_b32 exec_lo, -1')
        for aa in range(4):
            e(f'ds_write_b64 v12, {vr(P + 2 * aa, 2)} offset:{16 * aa}')
        e('s_waitcnt lgkmcnt(0)')
        for i in range(2):
            for jj in range(2):
                e(f'ds_read_b64_tr_b16 {vr(P + 4 * i + 2 * jj, 2)}, v13 offset:{(16 * i + 8 * jj) * 72}')
        e('s_waitcnt lgkmcnt(0)')
        A.label(LE)
        e(f'buffer_store_dwordx4 {vr(P, 4)}, v3, s[{SWS}:{SWS + 3}], s79 offen sc1')
        e(f'buffer_store_dwordx4 {vr(P + 4, 4)}, v3, s[{SWS}:{SWS + 3}], s79 offen offset:1024 sc1')
    Q, O, S, P, KV, K0, T2 = 16, 48, [112, 128], [144, 152], 160, 224, 232
    e(f's_add_u32 s72, s{sH}, 16\ns_lshl_b32 s72, s72, 7\ns_add_u32 s72, s72, {WS_LU}')
    e(f's_lshl_b32 s73, s{sH}, 7\ns_lshl_b32 s74, s{sRBA}, 2\ns_add_u32 s73, s73, s74\ns_add_u32 s73, s73, {WS_LU}')
    e('v_and_b32 v4, 15, v0\nv_lshlrev_b32 v4, 2, v4\nv_bfe_u32 v5, v0, 4, 1\nv_lshl_add_u32 v4, v5, 11, v4\nv_add_u32 v4, s72, v4')
    e('s_mov_b32 exec_lo, 0\nv_mov_b32 v4, s73\ns_mov_b32 exec_lo, -1')
    e(f's_lshl_b32 s72, s77, 7\ns_lshl_b32 s74, s{sRB}, 2\ns_add_u32 s72, s72, s74\ns_add_u32 s72, s72, {WS_LU}')
    e(f'v_lshl_add_u32 v5, v0, 7, s72\nv_mov_b32 v6, s{sTAG}')
    e('s_waitcnt vmcnt(0)')
    stamp(3)
    e('s_mov_b64 exec, 1\nds_add_rtn_u32 v7, v1, v2 offset:%d\ns_mov_b64 exec, -1' % C_A1)
    e(f's_mov_b32 s{sPASS}, 4')
    for r in range(O, O + 64):
        e(f'v_mov_b32 v{r}, 0')
    for r in range(P[1], P[1] + 8):
        e(f'v_mov_b32 v{r}, 0')
    e('s_waitcnt lgkmcnt(0)\nv_readfirstlane_b32 s75, v7')
    L1, L2, L3 = A.newlabel(), A.newlabel(), A.newlabel()
    e(f's_cmp_lg_u32 s75, 3\ns_cbranch_scc1 {L1}')
    e(f's_mov_b64 exec, 7\nbuffer_store_dword v6, v5, s[{SWS}:{SWS + 3}], 0 offen sc1\ns_mov_b64 exec, -1')
    A.label(L1)
    e(f's_cmp_lg_u32 s75, 0\ns_cbranch_scc1 {L2}')
    global_poll(4, 7)
    e(f'ds_write_b32 v1, v2 offset:{C_RELA}\ns_branch {L3}')
    A.label(L2)
    lds_wait_ge(1, 7, C_RELA, 1)
    A.label(L3)
    stamp(4)
    e(f's_lshl_b32 s72, s{sH}, 6\ns_lshl_b32 s73, s{sRBA}, 2\ns_add_u32 s73, s73, s72\ns_lshl_b32 s73, s73, 11\ns_add_u32 s73, s73, {WS_Q}')
    e(f's_lshl_b32 s76, s{sH}, 18\ns_add_u32 s76, s76, {WS_KV}')
    e(f's_lshl_b32 s77, s{sG}, 16\ns_add_u32 s77, s77, s76')
    e(f'buffer_load_dwordx4 {vr(K0, 4)}, v3, s[{SWS}:{SWS + 3}], s76 offen sc1')
    e(f'buffer_load_dwordx4 {vr(K0 + 4, 4)}, v3, s[{SWS}:{SWS + 3}], s76 offen offset:1024 sc1')
    for g in range(4):
        if g == 2:
            e('s_add_u32 s73, s73, 4096')
        for i in range(2):
            e(f'buffer_load_dwordx4 {vr(Q + 8 * g + 4 * i, 4)}, v3, s[{SWS}:{SWS + 3}], s73 offen offset:{(g & 1) * 2048 + i * 1024} sc1')

    def kv_load(slot, soff):
        for i in range(4):
            e(f'buffer_load_dwordx4 {vr(KV + 16 * slot + 4 * i, 4)}, v3, s[{SWS}:{SWS + 3}], {soff} offen offset:{1024 * i} sc1')

    def first_tiles():
        kv_load(0, 's77')
        e('s_add_u32 s78, s77, 4096')
        kv_load(1, 's78')
        e('s_add_u32 s78, s77, 8192')
        kv_load(2, 's78')

    first_tiles()
    ST = [S[0], S[1], T2, KV + 48]
    for g in range(4):
        e(f's_waitcnt vmcnt({12 + 2 * (3 - g)})')
        mfma(ST[g], K0, Q + 8 * g, None)
        mfma(ST[g], K0 + 4, Q + 8 * g + 4, ST[g])
    MX = 248

    def max16(dst, src, first):
        if first:
            e(f'v_max3_f32 v{dst}, v{src}, v{src + 1}, v{src + 2}')
            rest = list(range(src + 3, src + 16))
        else:
            rest = list(range(src, src + 16))
        while len(rest) >= 2:
            e(f'v_max3_f32 v{dst}, v{dst}, v{rest[0]}, v{rest[1]}')
            rest = rest[2:]
        if rest:
            e(f'v_max_f32 v{dst}, v{dst}, v{rest[0]}')

    def set_ref():
        for g in range(4):
            e(f'v_mov_b32 v{252 + g}, v{MX + g}')
        e('s_nop 0')
        for g in range(4):
            e(f'v_permlane32_swap_b32 v{MX + g}, v{252 + g}')
        for g in range(4):
            e(f'v_max_f32 v{MX + g}, v{MX + g}, v{252 + g}')
        ref_from_max()

    def ref_from_max():
        e(f's_mov_b32 exec_lo, 0\ns_mov_b32 s72, {f32(-BIAS)}')
        for g in range(4):
            e(f'v_sub_f32 v{MX + g}, s72, v{MX + g}')
        for g in range(4):
            e(f'v_cvt_pk_bf16_f32 v{252 + g}, v{MX + g}, v{MX + g}')
        for g in range(4):
            e(f'v_lshlrev_b32 v{252 + g}, 16, v{252 + g}')
        for g in range(4):
            e(f'v_sub_f32 v{252 + g}, v{MX + g}, v{252 + g}')
        for g in range(4):
            e(f'v_cvt_pk_bf16_f32 v{Q + 8 * g + 6}, v{MX + g}, v{252 + g}')
        for g in range(4):
            e(f'v_and_b32 v{MX + g}, 0xffff0000, v{Q + 8 * g + 6}')
        for g in range(4):
            e(f'v_sub_f32 v{252 + g}, v{252 + g}, v{MX + g}')
        for g in range(4):
            e(f'v_cvt_pk_bf16_f32 v{Q + 8 * g + 7}, v{252 + g}, 0')
        e('s_mov_b32 exec_lo, -1')

    e('s_nop 7')
    for g in range(4):
        if g == 3:
            e('s_nop 3')
        max16(MX + g, ST[g], True)
    set_ref()
    A.label('L_attn_start')
    for r in range(KV + 56, KV + 64):
        e(f'v_mov_b32 v{r}, 0')
    e('s_waitcnt vmcnt(8)')
    mfma(S[0], KV, Q, None)
    mfma(S[0], KV + 4, Q + 4, S[0])
    e('s_add_u32 s78, s77, 12288\ns_add_u32 s79, s77, 65536\ns_mov_b32 s80, 4')
    e('s_nop 7')
    stamp(5)

    def unit(ts, g):
        n = 4 * ts + g
        sa, sb = S[n & 1], S[(n + 1) & 1]
        pa, pb = P[n & 1], P[(n + 1) & 1]
        nts, ng = ((ts + 1) & 3, 0) if g == 3 else (ts, g + 1)
        pts, pg = ((ts - 1) & 3, 3) if g == 0 else (ts, g - 1)
        kq = KV + 16 * nts
        vv = KV + 16 * pts + 8
        mf = [
            lambda: mfma(sb, kq, Q + 8 * ng, None),
            lambda: mfma(O + 16 * pg, vv, pb, O + 16 * pg),
            lambda: mfma(sb, kq + 4, Q + 8 * ng + 4, sb),
            lambda: mfma(O + 16 * pg, vv + 4, pb + 4, O + 16 * pg),
        ]
        for k in range(4):
            if k == 0 and g == 3:
                e('s_waitcnt vmcnt(8)')
            mf[k]()
            if k == 3 and g == 0:
                e('s_cmp_lt_u32 s78, s79\ns_cselect_b32 s81, s78, 0x7ff00000\ns_add_u32 s78, s78, 4096')
                kv_load(pts, 's81')
            for j in range(4):
                r = sa + 4 * k + j
                e(f'v_exp_f32 v{r}, v{r}')
            if k > 0:
                for j in range(2):
                    r = sa + 4 * (k - 1) + 2 * j
                    e(f'v_cvt_pk_bf16_f32 v{pa + 2 * (k - 1) + j}, v{r}, v{r + 1}')
        e(f'v_cvt_pk_bf16_f32 v{pa + 6}, v{sa + 12}, v{sa + 13}')
        e(f'v_cvt_pk_bf16_f32 v{pa + 7}, v{sa + 14}, v{sa + 15}')

    A.raw('.p2align 6')
    A.label('L_attn_loop')
    for ts in range(4):
        for g in range(4):
            unit(ts, g)
    e('s_sub_u32 s80, s80, 1\ns_cmp_lg_u32 s80, 0\ns_cbranch_scc1 L_attn_loop')
    mfma(O + 48, KV + 56, P[1], O + 48)
    mfma(O + 48, KV + 60, P[1] + 4, O + 48)
    stamp(6)
    lds_wait_ge(1, 7, C_GDONE, 1)
    e(f's_mul_i32 s72, s{sG}, 12288\nv_add_u32 v4, s72, v3')
    e(f's_mov_b32 s73, {f32(LIMIT)}')
    e('s_waitcnt vmcnt(0)\ns_nop 7')
    e('s_mov_b32 exec_lo, 0')
    e(f'v_cmp_ngt_f32 vcc, s73, v{O + 12}')
    for g in range(1, 4):
        e(f'v_cmp_ngt_f32 s[74:75], s73, v{O + 16 * g + 12}\ns_or_b64 vcc, vcc, s[74:75]')
    e('s_mov_b32 exec_lo, -1')
    LN = A.newlabel()
    if not FORCE_REDO:
        e(f's_cbranch_vccz {LN}')
    e(f'ds_write_b32 v1, v2 offset:{C_REDO}')
    A.label(LN)
    OWN = S[0]
    for j in range(4):
        LJ = A.newlabel()
        e(f's_cmp_lg_u32 s{sG}, {j}\ns_cbranch_scc1 {LJ}')
        for k in range(3):
            g = (j + 1 + k) & 3
            for q in range(4):
                e(f'ds_write_b128 v4, {vr(O + 16 * g + 4 * q, 4)} offset:{4096 * k + 1024 * q}')
        for r in range(0, 16, 2):
            e(f'v_pk_mul_f32 {vr(OWN + r, 2)}, {vr(O + 16 * j + r, 2)}, 1.0 op_sel_hi:[1,0]')
        A.label(LJ)
    e('s_waitcnt lgkmcnt(0)')
    lds_arrive(1, 2, C_A2)
    for k in range(3):
        e(f's_sub_u32 s72, s{sG}, {k + 1}\ns_and_b32 s72, s72, 3\ns_mul_i32 s72, s72, 12288\ns_add_u32 s72, s72, {4096 * k}\nv_add_u32 v{5 + k}, s72, v3')
    LW, LD = A.newlabel('LW'), A.newlabel('LD')
    e('s_mov_b32 s3, 0x40000')
    A.label(LW)
    e(f'ds_read_b64 v[8:9], v1 offset:{C_A2}\ns_waitcnt lgkmcnt(0)\nv_readfirstlane_b32 s71, v8\nv_readfirstlane_b32 s72, v9')
    e(f's_cmp_ge_u32 s71, s{sPASS}\ns_cbranch_scc1 {LD}\ns_sleep 1\ns_sub_u32 s3, s3, 1\ns_cmp_lg_u32 s3, 0\ns_cbranch_scc1 {LW}')
    A.label(LD)
    LGO = A.newlabel()
    e(f's_cmp_lg_u32 s{sPASS}, 4\ns_cbranch_scc1 {LGO}\ns_cmp_lg_u32 s72, 0\ns_cbranch_scc1 L_redo')
    A.label(LGO)
    for k in range(3):
        for q in range(4):
            e(f'ds_read_b128 {vr(O + 16 * k + 4 * q, 4)}, v{5 + k} offset:{1024 * q}')
    e(f's_lshl_b32 s72, s{sRBA}, 2\ns_add_u32 s72, s72, s{sG}\ns_lshl_b32 s72, s72, 4\ns_add_u32 s72, s72, s{sH}\ns_lshl_b32 s72, s72, 11\ns_add_u32 s79, s72, {WS_O}')
    for k in range(3):
        e(f's_waitcnt lgkmcnt({8 - 4 * k})')
        for r in range(0, 16, 2):
            e(f'v_pk_add_f32 {vr(OWN + r, 2)}, {vr(OWN + r, 2)}, {vr(O + 16 * k + r, 2)}')
    e(f'v_mov_b32 v8, v{OWN + 12}\nv_mov_b32 v9, v{OWN + 12}\ns_nop 1\nv_permlane32_swap_b32 v8, v9\nv_rcp_f32 v8, v9\ns_nop 0')
    for r in range(0, 16, 2):
        e(f'v_pk_mul_f32 {vr(OWN + r, 2)}, {vr(OWN + r, 2)}, v[8:9] op_sel_hi:[1,0]')
    for i in range(8):
        e(f'v_cvt_pk_bf16_f32 v{P[0] + i}, v{OWN + 2 * i}, v{OWN + 2 * i + 1}')
    e(f's_mov_b32 exec_lo, 0\nv_mov_b32 v{P[0] + 6}, 0\nv_mov_b32 v{P[0] + 7}, 0\ns_mov_b32 exec_lo, -1')
    e(f'buffer_store_dwordx4 {vr(P[0], 4)}, v3, s[{SWS}:{SWS + 3}], s79 offen sc1')
    e(f'buffer_store_dwordx4 {vr(P[0] + 4, 4)}, v3, s[{SWS}:{SWS + 3}], s79 offen offset:1024 sc1')
    e(f's_lshl_b32 s72, s{sRBA}, 7\ns_lshl_b32 s73, s{sH}, 2\ns_add_u32 s72, s72, s73\ns_add_u32 s72, s72, {WS_LO}\nv_mov_b32 v5, s72\nv_mov_b32 v6, s{sTAG}')
    e('s_waitcnt vmcnt(0)')
    stamp(7)
    e(f's_mov_b64 exec, 1\nds_add_rtn_u32 v7, v1, v2 offset:{C_A3}\ns_waitcnt lgkmcnt(0)\nv_readfirstlane_b32 s75, v7')
    LX = A.newlabel()
    e(f's_cmp_lg_u32 s75, 3\ns_cbranch_scc1 {LX}')
    e(f'buffer_store_dword v6, v5, s[{SWS}:{SWS + 3}], 0 offen sc1')
    A.label(LX)
    e('s_mov_b64 exec, -1')
    LY = A.newlabel()
    e(f's_lshl_b32 s72, s2, 3\ns_add_u32 s72, s72, s{sWAVE}\ns_cmp_lg_u32 s72, 1\ns_cbranch_scc1 {LY}')
    e(f'v_lshrrev_b32 v4, 4, v0\nv_mul_u32_u24 v4, 384, v4\nv_and_b32 v5, 15, v0\nv_lshl_add_u32 v4, v5, 2, v4\nv_add_u32 v4, {WS_LU}, v4')
    for i in range(1, 4):
        e(f'v_add_u32 v{4 + i}, {4 * 384 * i}, v4')
    global_poll(4, 8, 4)
    e(f's_mov_b64 exec, 1\nv_mov_b32 v4, 0\nv_mov_b32 v5, s{sTAG}\nbuffer_store_dword v5, v4, s[{SWS}:{SWS + 3}], 0 offen sc1\ns_mov_b64 exec, -1')
    A.label(LY)
    stamp_store()
    e('s_endpgm')

    A.label('L_redo')
    e(f's_mov_b32 s{sPASS}, 8\ns_mov_b32 exec_lo, 0')
    for g in range(4):
        e(f'v_mov_b32 v{Q + 8 * g + 6}, 0\nv_mov_b32 v{Q + 8 * g + 7}, 0')
    e('s_mov_b32 exec_lo, -1')
    for g in range(4):
        e(f'v_mov_b32 v{MX + g}, 0xff800000')
    e('s_mov_b32 s78, s77\ns_mov_b32 s80, 16')
    A.label('L_redo_loop')
    e(f'buffer_load_dwordx4 {vr(K0, 4)}, v3, s[{SWS}:{SWS + 3}], s78 offen sc1')
    e(f'buffer_load_dwordx4 {vr(K0 + 4, 4)}, v3, s[{SWS}:{SWS + 3}], s78 offen offset:1024 sc1')
    e('s_waitcnt vmcnt(0)')
    for g in range(4):
        mfma(ST[g], K0, Q + 8 * g, None)
        mfma(ST[g], K0 + 4, Q + 8 * g + 4, ST[g])
    e('s_nop 15')
    for g in range(4):
        max16(MX + g, ST[g], False)
    e('s_add_u32 s78, s78, 4096\ns_sub_u32 s80, s80, 1\ns_cmp_lg_u32 s80, 0\ns_cbranch_scc1 L_redo_loop')
    e(f's_lshl_b32 s72, s{sG}, 10\nv_add_u32 v4, s72, v3\nds_write_b128 v4, {vr(MX, 4)}')
    e('s_waitcnt lgkmcnt(0)')
    lds_arrive(1, 2, C_M)
    lds_wait_ge(1, 7, C_M, 4)
    for w in range(4):
        e(f'ds_read_b128 {vr(S[0] + 4 * w, 4)}, v3 offset:{1024 * w}')
    first_tiles()
    for r in range(O, O + 64):
        e(f'v_mov_b32 v{r}, 0')
    for r in range(P[1], P[1] + 8):
        e(f'v_mov_b32 v{r}, 0')
    e('s_waitcnt lgkmcnt(0)')
    for g in range(4):
        e(f'v_max3_f32 v{MX + g}, v{S[0] + g}, v{S[0] + 4 + g}, v{S[0] + 8 + g}\nv_max_f32 v{MX + g}, v{MX + g}, v{S[0] + 12 + g}')
    lds_arrive(1, 2, C_M)
    set_ref()
    lds_wait_ge(1, 7, C_M, 8)
    e('s_branch L_attn_start')


def ffn_role():
    A.label('L_ffn')
    A.vm_reset()
    X, ACC, WB = 16, 128, 240
    e('s_mov_b32 s72, 0x15555556')
    for i in range(3):
        e(f'v_add_u32 v12, {64 * i}, v0\nv_mul_hi_u32 v13, v12, s72\nv_mul_u32_u24 v14, 12, v13\nv_sub_u32 v14, v12, v14')
        e(f'v_lshlrev_b32 v14, 4, v14\nv_min_u32 v14, 152, v14\nv_mul_u32_u24 v13, 2688, v13\nv_add_u32 v{1 + i}, v13, v14')
    e(f's_mul_i32 s73, s{sG}, {16 * 2688}\ns_mul_i32 s74, s{sS}, 168\ns_add_u32 s73, s73, s74')
    e(f's_mul_i32 s74, s{sG}, 3072')
    e(f's_mul_i32 s75, s{sG}, {8 * 192}\nv_add_u32 v8, s75, v8\nv_add_u32 v9, s75, v9')
    e('s_waitcnt lgkmcnt(0)')
    if INSTR:
        e('s_mov_b32 s86, s84')
    common_srds()
    for u in range(3):
        for i in range(3):
            e(f's_add_u32 m0, s74, {WQA + 12288 * u + 1024 * i}\ns_add_u32 s75, s73, {64 * u * 2688}')
            A.vmop(f'buffer_load_dwordx4 v{1 + i}, s[{SWQ}:{SWQ + 3}], s75 offen lds', f'wq{u}')
    e('s_getpc_b64 s[76:77]')
    A.label('L_pc')
    e(f's_sub_u32 s76, s76, L_pc-{NAME}_kernel\ns_subb_u32 s77, s77, 0')
    e(f's_lshl_b32 s75, s{sG}, 13\nv_lshlrev_b32 v12, 7, v0\nv_add_u32 v12, s75, v12\nv_min_u32 v12, L_code_end-{NAME}_kernel-4, v12')
    A.vmop('global_load_dword v188, v12, s[76:77]', 'code')
    e(f'v_add_u32 v12, 0x8000, v12\nv_min_u32 v12, L_code_end-{NAME}_kernel-4, v12')
    A.vmop('global_load_dword v188, v12, s[76:77]', 'code')
    for u in range(3, 7):
        for i in range(3):
            e(f's_add_u32 s75, s73, {64 * u * 2688}')
            A.vmop(f'buffer_load_dwordx4 {vr(ACC + 12 * (u - 3) + 4 * i, 4)}, v{1 + i}, s[{SWQ}:{SWQ + 3}], s75 offen', f'wq{u}')
    srd(SW2, 16, 1792 * 896)
    srd(SWO, 8, 448 * 896)
    srd(SOUT, 18, 2048 * 896)
    e(f's_cmp_ge_u32 s{sG}, 2\ns_cselect_b32 s{SSEL}, s14, s12\ns_cselect_b32 s{SSEL + 1}, s15, s13\ns_mov_b32 s{SSEL + 2}, {448 * 3584}\ns_mov_b32 s{SSEL + 3}, 0x20000')
    e(f's_mov_b32 s{sONE}, 0x3f803f80')
    e('v_lshlrev_b32 v15, 4, v0\nv_add_u32 v15, s74, v15')
    e('s_mov_b32 s72, 0x12492493\nv_mul_hi_u32 v13, v0, s72\nv_mul_u32_u24 v14, 14, v13\nv_sub_u32 v14, v0, v14\nv_mul_u32_u24 v13, 3584, v13\nv_lshl_add_u32 v191, v14, 4, v13')
    e(f's_and_b32 s72, s{sG}, 1\ns_mul_i32 s78, s72, {32 * 3584}\ns_mul_i32 s75, s{sSIG}, 224\ns_add_u32 s78, s78, s75')
    e(f's_mul_i32 s79, s72, {32 * 224}\ns_lshr_b32 s72, s{sG}, 1\ns_mul_i32 s72, s72, {W3OFF}\ns_add_u32 s79, s79, s72')
    SUM, SQ, CSQ, CW = [12, 14], [13, 192], 193, 176
    for r in (12, 13, 14, 192, 193, 194, 195):
        e(f'v_mov_b32 v{r}, 0')
    e('s_waitcnt lgkmcnt(0)')
    finish_tag()

    def stage_dma(t, vo):
        e('s_mov_b32 exec_hi, 0xffffff')
        for i in range(8):
            e(f's_add_u32 m0, s79, {SLOT[STAGE_SLOT[t]] + 4 * i * 224}\ns_add_u32 s75, s78, {(64 * t + 4 * i) * 3584}')
            A.vmop(f'buffer_load_dwordx4 v{vo}, s[{SSEL}:{SSEL + 3}], s75 offen lds', f'st{t}')
        e('s_mov_b32 exec_hi, -1')

    def wq_write(u):
        A.vm_wait(f'wq{u}')
        for i in range(3):
            e(f'ds_write_b128 v15, {vr(ACC + 12 * (u - 3) + 4 * i, 4)} offset:{12288 * (u - 3) + 1024 * i}')

    for u in range(7):
        if u < 3:
            A.vm_wait(f'wq{u}')
        e('s_barrier')
        if u == 0:
            stamp(1)
        if u == 3:
            e(f'v_subrev_u32 v8, {WQA}, v8\nv_subrev_u32 v9, {WQA}, v9')
        if u == 4:
            for q in range(4):
                e(f'v_add_u32 v{4 + q}, 0x10000, v{4 + q}')
        xo = u * 16384 if u < 4 else (u - 4) * 16384
        for q in range(4):
            e(f'ds_read_b128 {vr(X + 16 * u + 4 * q, 4)}, v{4 + q} offset:{xo}')
        cb = 12288 * (u if u < 3 else u - 3)
        for t in range(3):
            for h in range(2):
                off = cb + 4 * h * 192 + (56 * t if t < 2 else 0)
                e(f'ds_read_b64_tr_b16 {vr(CW + 4 * t + 2 * h, 2)}, v{8 if t < 2 else 9} offset:{off}')
        if u == 5:
            stage_dma(0, 191)
        e('s_waitcnt lgkmcnt(6)')
        for r in range(16):
            x = X + 16 * u + r
            e(f'v_dot2c_f32_bf16 v{SUM[r & 1]}, s{sONE}, v{x}\nv_dot2c_f32_bf16 v{SQ[r & 1]}, v{x}, v{x}')
        e('s_waitcnt lgkmcnt(0)')
        for r in range(4):
            for t in range(3):
                e(f'v_dot2c_f32_bf16 v{CSQ + t}, s{sONE}, v{CW + 4 * t + r}')
        if u == 1:
            wq_write(3)
        if u == 2:
            wq_write(4)
        if u == 3:
            wq_write(5)
            wq_write(6)
        if u in (1, 2, 3):
            e('s_waitcnt lgkmcnt(0)')
    e(f'v_lshlrev_b32 v15, 2, v10\nv_add_u32 v15, {CT + C_CSQ}, v15\ns_nop 0')
    for t in range(3):
        e(f'ds_add_f32 v15, v{CSQ + t} offset:{128 * t}')
    e('v_add_f32 v12, v12, v14\nv_add_f32 v13, v13, v192\nv_mov_b32 v14, v12\nv_mov_b32 v192, v13\ns_nop 1')
    e('v_permlane32_swap_b32 v12, v14\nv_permlane32_swap_b32 v13, v192')
    e(f'v_add_f32 v12, v12, v14\nv_add_f32 v13, v13, v192\nv_mul_f32 v12, {f32(1 / 448)}, v12\nv_mul_f32 v13, {f32(1 / 448)}, v13')
    e(f'v_fma_f32 v13, -v12, v12, v13\nv_max_f32 v13, 0, v13\nv_add_f32 v4, {f32(1e-5)}, v13\nv_rsq_f32 v13, v4')
    e(f's_lshl_b32 s72, s{sG}, 7\ns_add_u32 s72, s72, {CT + C_STAT}\nv_lshl_add_u32 v14, v10, 2, s72\nv_lshl_add_u32 v14, v11, 9, v14')
    e('v_cmp_ne_u32 vcc, 0, v11\nv_mov_b32 v1, v191\ns_nop 0\nv_cndmask_b32 v15, v12, v13, vcc\nds_write_b32 v14, v15')
    e(f'v_mul_f32 v3, {f32(-LOG2E)}, v13')
    e('v_cvt_pk_bf16_f32 v14, v12, v12\nv_lshlrev_b32 v14, 16, v14\nv_sub_f32 v15, v12, v14\nv_cndmask_b32 v14, v14, v15, vcc\nv_cvt_pk_bf16_f32 v5, -v14, -v14')
    e('s_waitcnt lgkmcnt(0)\ns_barrier')
    stamp(2)
    for t in (1, 2, 3):
        stage_dma(t, 1)
    e('v_bfe_u32 v12, v0, 2, 2\nv_lshl_add_u32 v12, v11, 5, v12\nv_mul_u32_u24 v12, 224, v12\nv_and_b32 v13, 3, v0\nv_lshl_add_u32 v12, v13, 3, v12')
    e(f'v_bfe_u32 v13, v0, 4, 1\nv_mul_u32_u24 v13, {W3OFF}, v13\nv_add_u32 v2, v12, v13\nv_add_u32 v2, {SLOT[0]}, v2')
    e(f'v_mov_b32 v6, {CT}\nv_mov_b32 v7, 1')
    CS = 8
    for r in range(CS, CS + 7):
        e(f'v_mov_b32 v{r}, 0')
    nbar = [0]

    def ffn_barrier():
        nbar[0] += 1
        lds_arrive(6, 7, C_F)
        lds_wait_ge(6, 15, C_F, 4 * nbar[0])

    for q in range(4):
        e(f's_add_u32 s72, s{sG}, {q}\ns_and_b32 s72, s72, 3\ns_mul_i32 s{80 + q}, s72, {8 * 224}')
    RA = [15, 0]
    for t in range(7):
        A.vm_wait(f'st{t}')
        ffn_barrier()
        if t == 0:
            stamp(3)
        if 1 <= t <= 3:
            stage_dma(t + 3, 1)
        if t > 0:
            d = SLOT[STAGE_SLOT[t]] - SLOT[STAGE_SLOT[t - 1]]
            e(f'v_add_u32 v2, {d & 0xffffffff:#x}, v2')
        frs = [(q, tt) for q in range(4) for tt in range(7)]

        def rd(f):
            q, tt = frs[f]
            if tt == 0:
                e(f'v_add_u32 v{RA[q & 1]}, s{80 + q}, v2')
            b = WB + 4 * (f & 3)
            for h in range(2):
                e(f'ds_read_b64_tr_b16 {vr(b + 2 * h, 2)}, v{RA[q & 1]} offset:{4 * h * 224 + 32 * tt}')

        for f in range(3):
            rd(f)
        for f in range(28):
            q, tt = frs[f]
            b = WB + 4 * (f & 3)
            left = min(2, 27 - f)
            e(f's_waitcnt lgkmcnt({2 * left})')
            mfma(ACC + 16 * tt, b, X + 16 * t + 4 * q, None if (t == 0 and q == 0) else ACC + 16 * tt)
            if f + 3 < 28:
                rd(f + 3)
            if q == 0:
                for r in range(4):
                    e(f'v_dot2c_f32_bf16 v{CS + tt}, s{sONE}, v{b + r}')
    e('v_mbcnt_lo_u32_b32 v0, -1, 0\nv_mbcnt_hi_u32_b32 v0, -1, v0')
    stamp(4)
    e(f'v_and_b32 v15, 31, v0\nv_lshlrev_b32 v15, 2, v15\nv_add_u32 v1, {CT + C_CSF}, v15\ns_nop 0')
    for tt in range(7):
        e(f'ds_add_f32 v1, v{CS + tt} offset:{128 * tt}')
    e('s_waitcnt lgkmcnt(0)')
    ffn_barrier()
    e(f'ds_write_b32 v6, v7 offset:{C_GDONE}')
    for tt in range(7):
        e(f'ds_read_b32 v{CS + tt}, v1 offset:{128 * tt}')
    HR, WFR = 16, 64
    LNF = A.newlabel()
    e('v_lshrrev_b32 v16, 3, v0\nv_mul_u32_u24 v16, 896, v16\nv_and_b32 v17, 7, v0\nv_bfe_u32 v18, v0, 4, 1\nv_lshlrev_b32 v18, 2, v18\nv_xor_b32 v17, v17, v18\nv_lshl_add_u32 v2, v17, 4, v16')
    e(f's_mul_i32 s78, s{sG}, {448 * 896}\ns_lshl_b32 s72, s{sCB}, 7\ns_add_u32 s78, s78, s72')
    e(f's_mul_i32 s79, s{sG}, 12288\ns_add_u32 s79, s79, {W2R}')
    e(f's_mul_i32 s80, s{sG}, {112 * 896}\ns_add_u32 s80, s80, s72')
    e(f's_mul_i32 s81, s{sG}, 15360\ns_add_u32 s81, s81, {WOI}')

    def w2_dma(k):
        for i in range(2):
            e(f's_add_u32 m0, s79, {(k % 6) * 2048 + i * 1024}\ns_add_u32 s75, s78, {(16 * k + 8 * i) * 896}')
            A.vmop(f'buffer_load_dwordx4 v2, s[{SW2}:{SW2 + 3}], s75 offen lds', f'w2_{k}')

    assert not A.vm
    e(f's_cmp_ge_u32 s{sIDX}, 28\ns_cbranch_scc1 {LNF}')
    for k in range(6):
        w2_dma(k)
    for i in range(15):
        e(f's_add_u32 m0, s81, {i * 1024}\ns_add_u32 s75, s80, {8 * i * 896}')
        A.vmop(f'buffer_load_dwordx4 v2, s[{SWO}:{SWO + 3}], s75 offen lds', 'wo')
    A.label(LNF)
    XF = 16
    e(f'v_mov_b32 v{XF}, v5')
    for r in range(XF + 1, XF + 4):
        e(f'v_mov_b32 v{r}, 0')
    for tt in range(7):
        for r in range(1, 4):
            e(f'v_mov_b32 v{20 + 4 * tt + r}, 0')
    e('s_waitcnt lgkmcnt(0)')
    for tt in range(7):
        c = CS + tt
        e(f'v_cvt_pk_bf16_f32 v15, v{c}, v{c}\nv_lshlrev_b32 v15, 16, v15\nv_sub_f32 v15, v{c}, v15\nv_cvt_pk_bf16_f32 v{20 + 4 * tt}, v{c}, v15')
    e('s_nop 1')
    for tt in range(7):
        mfma(ACC + 16 * tt, 20 + 4 * tt, XF, ACC + 16 * tt)
    e(f's_lshl_b32 s72, s{sRB}, 2\ns_add_u32 s72, s72, s{sG}\ns_mul_i32 s72, s72, 112\ns_mul_i32 s73, s{sSIG}, 7\ns_add_u32 s72, s72, s73\ns_lshl_b32 s72, s72, 10\ns_add_u32 s82, s72, {WS_H}')
    e('v_lshlrev_b32 v1, 4, v0\nv_mov_b32 v8, v3\nv_mov_b32 v12, v4\ns_nop 2')
    T1, T2, HP = 48, 56, 64
    for tt in range(7):
        a = ACC + 16 * tt
        for i in range(4):
            e(f'v_pk_mul_f32 {vr(T1 + 2 * i, 2)}, {vr(a + 2 * i, 2)}, v[8:9] op_sel_hi:[1,0]')
        for i in range(8):
            e(f'v_exp_f32 v{T1 + i}, v{T1 + i}')
        for i in range(4):
            e(f'v_pk_mul_f32 {vr(T2 + 2 * i, 2)}, {vr(a + 2 * i, 2)}, {vr(a + 8 + 2 * i, 2)}')
        for i in range(4):
            e(f'v_pk_fma_f32 {vr(T1 + 2 * i, 2)}, {vr(T1 + 2 * i, 2)}, v[12:13], v[12:13] op_sel_hi:[1,0,0]')
        for i in range(8):
            e(f'v_rcp_f32 v{T1 + i}, v{T1 + i}')
        e('s_nop 0')
        for i in range(4):
            e(f'v_pk_mul_f32 {vr(T2 + 2 * i, 2)}, {vr(T2 + 2 * i, 2)}, {vr(T1 + 2 * i, 2)}')
        for i in range(4):
            e(f'v_cvt_pk_bf16_f32 v{HP + 4 * tt + i}, v{T2 + 2 * i}, v{T2 + 2 * i + 1}')
        if tt == 4:
            e('s_add_u32 s82, s82, 4096')
        A.vmop(f'buffer_store_dwordx4 {vr(HP + 4 * tt, 4)}, v1, s[{SWS}:{SWS + 3}], s82 offen offset:{1024 * (tt & 3)} sc1', 'h')
    e(f's_lshl_b32 s72, s{sRB}, 7\ns_lshl_b32 s73, s{sSIG}, 2\ns_add_u32 s72, s72, s73\ns_add_u32 s72, s72, {WS_LH}\nv_mov_b32 v8, s72\nv_mov_b32 v9, s{sTAG}')
    e(f's_lshr_b32 s72, s{sRB64}, 1\ns_lshl_b32 s72, s72, 7\ns_add_u32 s72, s72, {WS_LH}\nv_and_b32 v10, 15, v0\nv_lshlrev_b32 v10, 2, v10\nv_add_u32 v10, s72, v10')
    A.vm_wait_all()
    stamp(5)
    e(f's_mov_b64 exec, 1\nds_add_rtn_u32 v15, v6, v7 offset:{C_H}\ns_waitcnt lgkmcnt(0)\nv_readfirstlane_b32 s83, v15')
    L1 = A.newlabel()
    e(f's_cmp_lg_u32 s83, 3\ns_cbranch_scc1 {L1}')
    e(f'buffer_store_dword v9, v8, s[{SWS}:{SWS + 3}], 0 offen sc1')
    A.label(L1)
    e('s_mov_b64 exec, -1')
    e(f's_cmp_ge_u32 s{sIDX}, 28\ns_cbranch_scc1 L_ffn_end')
    e('v_lshrrev_b32 v11, 5, v0\nv_bfe_u32 v12, v0, 2, 2\nv_lshl_add_u32 v13, v11, 2, v12\nv_lshlrev_b32 v13, 7, v13')
    e('v_bfe_u32 v14, v0, 4, 1\nv_and_b32 v12, 2, v12\nv_xor_b32 v12, v12, v14\nv_lshl_add_u32 v13, v12, 5, v13\nv_and_b32 v12, 3, v0\nv_lshl_add_u32 v13, v12, 3, v13')
    e('v_xor_b32 v14, 64, v13\nv_add_u32 v3, s79, v13\nv_add_u32 v4, s79, v14\nv_add_u32 v12, s81, v13\nv_add_u32 v13, s81, v14')
    e(f's_lshl_b32 s72, s{sRB64}, 1\ns_lshr_b32 s73, s{sG}, 1\ns_add_u32 s72, s72, s73\ns_mul_i32 s72, s72, {32 * 896}')
    e(f's_lshl_b32 s73, s{sCB}, 1\ns_and_b32 s74, s{sG}, 1\ns_add_u32 s73, s73, s74\ns_lshl_b32 s73, s73, 6\ns_add_u32 s82, s72, s73')
    e('v_and_b32 v5, 31, v0\nv_mul_u32_u24 v5, 896, v5\nv_lshl_add_u32 v5, v11, 3, v5')
    L2, L3 = A.newlabel(), A.newlabel()
    e(f's_cmp_lg_u32 s83, 0\ns_cbranch_scc1 {L2}')
    global_poll(10, 15)
    e(f'ds_write_b32 v6, v7 offset:{C_RELH}\ns_branch {L3}')
    A.label(L2)
    lds_wait_ge(6, 15, C_RELH, 1)
    A.label(L3)
    stamp(6)
    A.vm = ['flag']
    e(f's_lshl_b32 s72, s{sRB64}, 1\ns_mul_i32 s72, s72, 112\ns_mul_i32 s73, s{sG}, 28\ns_add_u32 s72, s72, s73\ns_lshl_b32 s72, s72, 10\ns_add_u32 s76, s72, {WS_H}\ns_add_u32 s77, s76, {112 * 1024}')
    ACC2 = 128
    XO = 80

    def h_load(k):
        if k and k % 4 == 0:
            e('s_add_u32 s76, s76, 4096\ns_add_u32 s77, s77, 4096')
        for rg in range(2):
            A.vmop(f'buffer_load_dwordx4 {vr(HR + 8 * (k % 6) + 4 * rg, 4)}, v1, s[{SWS}:{SWS + 3}], s{76 + rg} offen offset:{1024 * (k & 3)} sc1', f'h{k}')

    def w2_read(k):
        b = WFR + 8 * (k & 1)
        for ct in range(2):
            for h in range(2):
                e(f'ds_read_b64_tr_b16 {vr(b + 4 * ct + 2 * h, 2)}, v{3 + ct} offset:{(k % 6) * 2048 + h * 1024}')

    for k in range(6):
        h_load(k)
    w2_read(0)
    for k in range(28):
        if k + 1 < 28:
            A.vm_wait([f'h{k}', f'w2_{k + 1}'])
            w2_read(k + 1)
            e('s_waitcnt lgkmcnt(4)')
        else:
            A.vm_wait([f'h{k}'], 'lgkmcnt(0)')
        b = WFR + 8 * (k & 1)
        for ct in range(2):
            for rg in range(2):
                a = ACC2 + 16 * (ct + 2 * rg)
                mfma(a, b + 4 * ct, HR + 8 * (k % 6) + 4 * rg, None if k == 0 else a)
        if k + 6 < 28:
            w2_dma(k + 6)
            h_load(k + 6)
        if k == 22:
            for aa in range(4):
                A.vmop(f'buffer_load_dwordx2 {vr(XO + 2 * aa, 2)}, v5, s[{SX}:{SX + 3}], s82 offen offset:{16 * aa}', 'xo')
    stamp(7)
    WOF = 176
    OWN = 96

    def reduce4(acc, sbase, stride, base0):
        e(f'v_add_u32 v14, s{sbase}, v1\ns_nop 9')
        for j in range(4):
            LJ = A.newlabel()
            e(f's_cmp_lg_u32 s{sG}, {j}\ns_cbranch_scc1 {LJ}')
            for k in range(3):
                g = (j + 1 + k) & 3
                for q in range(4):
                    e(f'ds_write_b128 v14, {vr(acc + 16 * g + 4 * q, 4)} offset:{4096 * k + 1024 * q}')
            for r in range(0, 16, 2):
                e(f'v_pk_mul_f32 {vr(OWN + r, 2)}, {vr(acc + 16 * j + r, 2)}, 1.0 op_sel_hi:[1,0]')
            A.label(LJ)
        e('s_waitcnt lgkmcnt(0)')
        nbar[0] += 1
        lds_arrive(6, 7, C_F)
        for k in range(3):
            e(f's_sub_u32 s72, s{sG}, {k + 1}\ns_and_b32 s72, s72, 3\ns_mul_i32 s72, s72, {stride}\ns_add_u32 s72, s72, {base0 + 4096 * k}\nv_add_u32 v{8 + k}, s72, v1')
        lds_wait_ge(6, 15, C_F, 4 * nbar[0])
        for k in range(3):
            for q in range(4):
                e(f'ds_read_b128 {vr(acc + 16 * k + 4 * q, 4)}, v{8 + k} offset:{1024 * q}')
        for k in range(3):
            e(f's_waitcnt lgkmcnt({8 - 4 * k})')
            for r in range(0, 16, 2):
                e(f'v_pk_add_f32 {vr(OWN + r, 2)}, {vr(OWN + r, 2)}, {vr(acc + 16 * k + r, 2)}')

    reduce4(ACC2, 79, 12288, W2R)
    for kk in range(8):
        for ct in range(2):
            for h in range(2):
                row = 28 * (kk >> 1) + 16 * (kk & 1) + 8 * h
                e(f'ds_read_b64_tr_b16 {vr(WOF + 8 * kk + 4 * ct + 2 * h, 2)}, v{12 + ct} offset:{row * 128}')
        if kk % 2 == 1:
            e('s_waitcnt lgkmcnt(4)')
    GG = 240
    e(f's_mov_b32 s72, {f32(-LOG2E)}')
    for r in range(16):
        e(f'v_mul_f32 v{GG + r}, s72, v{OWN + r}')
    for r in range(16):
        e(f'v_exp_f32 v{GG + r}, v{GG + r}')
    for r in range(16):
        e(f'v_add_f32 v{GG + r}, 1.0, v{GG + r}')
    for r in range(16):
        e(f'v_rcp_f32 v{GG + r}, v{GG + r}')
    e(f's_lshr_b32 s72, s{sRB64}, 1\ns_lshl_b32 s72, s72, 7\ns_add_u32 s72, s72, {WS_LO}\nv_and_b32 v10, 15, v0\nv_lshlrev_b32 v10, 2, v10\nv_add_u32 v10, s72, v10')
    for r in range(0, 16, 2):
        e(f'v_pk_mul_f32 {vr(GG + r, 2)}, {vr(GG + r, 2)}, {vr(OWN + r, 2)}')
    e(f's_lshl_b32 s72, s{sRB64}, 6\ns_lshl_b32 s73, s{sG}, 3\ns_add_u32 s72, s72, s73\ns_lshl_b32 s72, s72, 10\ns_add_u32 s76, s72, {WS_O}\ns_add_u32 s77, s76, 32768')
    A.vm_wait_all('lgkmcnt(0)')
    stamp(8)
    L2, L3 = A.newlabel(), A.newlabel()
    e(f's_cmp_lg_u32 s{sG}, 0\ns_cbranch_scc1 {L2}')
    global_poll(10, 15)
    e(f'ds_write_b32 v6, v7 offset:{C_RELO}\ns_branch {L3}')
    A.label(L2)
    lds_wait_ge(6, 15, C_RELO, 1)
    A.label(L3)
    stamp(9)
    OF = 16
    ACC3 = 112
    for kk in range(8):
        if kk == 4:
            e('s_add_u32 s76, s76, 4096\ns_add_u32 s77, s77, 4096')
        for rg in range(2):
            A.vmop(f'buffer_load_dwordx4 {vr(OF + 8 * kk + 4 * rg, 4)}, v1, s[{SWS}:{SWS + 3}], s{76 + rg} offen offset:{1024 * (kk & 3)} sc1', f'o{kk}')
    for kk in range(8):
        A.vm_wait(f'o{kk}')
        for ct in range(2):
            for rg in range(2):
                a = ACC3 + 16 * (ct + 2 * rg)
                mfma(a, WOF + 8 * kk + 4 * ct, OF + 8 * kk + 4 * rg, None if kk == 0 else a)
    stamp(10)
    for i in range(8):
        e(f'v_lshlrev_b32 v{16 + 2 * i}, 16, v{XO + i}\nv_and_b32 v{17 + 2 * i}, 0xffff0000, v{XO + i}')
    reduce4(ACC3, 81, 15360, WOI)
    for r in range(0, 16, 2):
        e(f'v_pk_fma_f32 {vr(OWN + r, 2)}, {vr(OWN + r, 2)}, {vr(GG + r, 2)}, {vr(16 + r, 2)}')
    for i in range(8):
        e(f'v_cvt_pk_bf16_f32 v{32 + i}, v{OWN + 2 * i}, v{OWN + 2 * i + 1}')
    for aa in range(4):
        e(f'buffer_store_dwordx2 {vr(32 + 2 * aa, 2)}, v5, s[{SOUT}:{SOUT + 3}], s82 offen offset:{16 * aa}')
    if INSTR:
        e('s_waitcnt vmcnt(0)')
    stamp(11)
    A.label('L_ffn_end')
    stamp_store()
    A.label('L_end')
    e('s_endpgm')
    A.label('L_code_end')


prologue()
attn_role()
ffn_role()

probs = check_hazards(A.lines)
for p in probs:
    print('HAZARD', p)

ref = open(f'cdna_kernels/{NAME}.s.ref').read().split('\n')
head = [l for l in ref if l.startswith(';') and '@launch' not in l]
text = '\n'.join(head) + f'\n; @launch grid=(256,1,1) block=(512,1,1) lds={LDS_BYTES}\n'
text += f'''.amdgcn_target "amdgcn-amd-amdhsa--gfx950"
.text
.globl {NAME}_kernel
.p2align 8
.type {NAME}_kernel,@function
{NAME}_kernel:
{A.text()}
.section .rodata,"a"
.p2align 6
.amdhsa_kernel {NAME}_kernel
  .amdhsa_next_free_vgpr 256
  .amdhsa_next_free_sgpr 102
  .amdhsa_accum_offset 256
  .amdhsa_group_segment_fixed_size 0
  .amdhsa_kernarg_size 80
  .amdhsa_user_sgpr_count 2
  .amdhsa_user_sgpr_kernarg_segment_ptr 1
  .amdhsa_system_sgpr_workgroup_id_x 1
.end_amdhsa_kernel
'''
open(OUT, 'w').write(text)
print('wrote', OUT, len(A.lines), 'lines,', len(probs), 'hazards')
```
